```python
import torch

def _softmax(x, axis=-1):
    return torch.softmax(x, dim=axis)
def _gelu(x):
    return torch.nn.functional.gelu(x, approximate="tanh")
def _silu(x):
    return torch.nn.functional.silu(x)
def _sigmoid(x):
    return torch.sigmoid(x)
def _layernorm(x, axis=-1, eps=1e-5):
    m = x.mean(dim=axis, keepdim=True)
    v = x.var(dim=axis, keepdim=True, unbiased=False)
    return (x - m) / torch.sqrt(v + eps)
def _scatter_add(tgt, idx, src, axis=0):
    return tgt.clone().index_add_(axis, idx, src)
def _segment_sum(src, seg, n):
    out = torch.zeros((n,) + src.shape[1:], dtype=src.dtype)
    return out.index_add_(0, seg, src)
def _pad(x, pw):
    flat = tuple(v for pair in reversed(pw) for v in pair)
    return torch.nn.functional.pad(x, flat)

kernel_name = 'standalone__gqa_softmax__near_ridge'

def setup_inputs():

    _w = (lambda a: (lambda t: t.to(torch.bfloat16) if t.is_floating_point() else t)(torch.as_tensor(a)))
    B, Hq, Hkv, Sq, Sk, D = 16, 32, 32, 624, 624, 128
    return {
        "q": _w((lambda *s: torch.randn(*s, dtype=torch.bfloat16) * 0.8)(B, Hq, Sq, D)),
        "k": _w((lambda *s: torch.randn(*s, dtype=torch.bfloat16) * 0.8)(B, Hkv, Sk, D)),
        "v": _w((lambda *s: torch.randn(*s, dtype=torch.bfloat16) * 0.05)(B, Hkv, Sk, D)),
    }

def reference(q, k, v):
    B, Hq, Sq, D = q.shape
    Hkv = k.shape[1]
    rep = Hq // Hkv
    k = (lambda x, n, axis: torch.repeat_interleave(x, n, dim=axis))(k, rep, axis=1)
    v = (lambda x, n, axis: torch.repeat_interleave(x, n, dim=axis))(v, rep, axis=1)
    scale = D ** -0.5
    scores = torch.einsum("bhqd,bhkd->bhqk", q, k) * scale
    p = _softmax(scores, axis=-1)
    return torch.einsum("bhqk,bhkd->bhqd", p, v)
```

```python
import re
RE=re.compile(r'\b([vas])(?:(\d+)|\[(\d+):(\d+)\])')
def regs(s):
    out=[]
    for m in RE.finditer(s):
        if m.group(2) is not None: out.append((m.group(1),int(m.group(2))))
        else: out+= [(m.group(1),i) for i in range(int(m.group(3)),int(m.group(4))+1)]
    return out
TRANS=("v_exp_f32","v_rcp_f32")
class I:
    def __init__(s,text,tag=None,kind=None):
        s.text=text; s.tag=tag; s.nop=0; s.vm=None; s.lg=None; s.rd=set(); s.wr=set(); s.crd=set()
        op=text.split()[0]; s.op=op
        ops=[x.strip() for x in text[len(op):].split(",")]
        R=lambda l:set(r for o in l for r in regs(o))
        if kind: s.kind=kind
        elif op.endswith(":") or op.startswith("."): s.kind="label"
        elif op.startswith("v_mfma"): s.kind="mfma"; s.wr=R(ops[:1]); s.rd=R(ops[1:3]); s.crd=R(ops[3:4])
        elif op.startswith("v_permlane"): s.kind="perm"; s.wr=R(ops); s.rd=R(ops)
        elif op.startswith("v_"): s.kind="trans" if op in TRANS else "valu"; s.wr=R(ops[:1]); s.rd=R(ops[1:])
        elif op.startswith("ds_read"): s.kind="ds"; s.wr=R(ops[:1]); s.rd=R(ops[1:])
        elif op.startswith("ds_write"): s.kind="ds"; s.rd=R(ops)
        elif op.startswith("buffer_load"):
            s.kind="vm"
            if text.rstrip().endswith("lds") or " lds " in text: s.rd=R(ops)|{("m",0)}
            else: s.wr=R(ops[:1]); s.rd=R(ops[1:])
        elif op.startswith("buffer_store"): s.kind="vm"; s.rd=R(ops); s.sdata=R(ops[:1])
        else:
            s.kind="salu"
            if ops and ops[0]=="m0": s.wr={("m",0)}
            elif not op.startswith(("s_cmp","s_cbranch","s_branch","s_barrier","s_nop","s_waitcnt","s_endpgm","s_setprio")): s.wr=R(ops[:1]); s.rd=R(ops[1:])
    def states(s):
        if s.kind=="label": return 0
        if s.op=="s_nop": return int(s.text.split()[1])+1
        return 1
def W(vm=None,lg=None):
    i=I("s_waitcnt",kind="wait"); i.wvm=vm; i.wlg=lg; return i
VAL=("valu","trans","perm")
def need(p,c):
    n=0
    if p.kind in VAL:
        if c.kind=="mfma" and p.wr&(c.rd|c.crd): n=2
        if c.kind=="perm" and p.wr&c.rd: n=max(n,2)
        if p.kind=="trans" and c.kind in("valu","perm") and p.wr&c.rd: n=max(n,1)
        if c.op.startswith("v_readfirstlane") and p.wr&c.rd: n=max(n,1)
        sw={r for r in p.wr if r[0]=="s"}
        if sw&c.rd: n=max(n,5 if c.kind=="vm" else 2)
        if p.op.startswith("v_cmp") and "vcc" in c.text and not c.op.startswith("v_cmp"): n=max(n,2)
    if p.kind=="mfma":
        if c.kind=="mfma":
            if p.wr&c.rd: n=8
            if p.wr&c.crd and p.wr!=c.crd: n=max(n,6)
            if p.wr&c.wr and not (p.wr==c.crd): n=max(n,6)
        elif p.wr&(c.rd|c.wr): n=8
        if c.kind in VAL and p.crd&c.wr: n=max(n,3)
    if p.op.startswith("buffer_store_dwordx4") and p.sdata&c.wr: n=max(n,2)
    if ("m",0) in p.wr and ("m",0) in c.rd: n=max(n,1)
    return n
def fix_hazards(path):
    for k,c in enumerate(path):
        d=c.nop; j=k-1
        while j>=0 and d<10:
            p=path[j]; n=need(p,c)
            if n>d: c.nop+=n-d; d=n
            d+=p.states()+p.nop; j-=1
def sim_waits(path,final):
    vq=[];lq=[]
    for c in path:
        if c.kind=="wait":
            for q,w,a,mx in((vq,c.wvm,"vm",63),(lq,c.wlg,"lg",15)):
                if w is None: continue
                if final: n=getattr(c,a); n=mx if n is None else n
                else:
                    idx=[i for i,x in enumerate(q) if w=="all" or x.tag==w]
                    if not idx: continue
                    n=min(mx,len(q)-1-idx[-1]); o=getattr(c,a); setattr(c,a,n if o is None else min(o,n))
                del q[:max(0,len(q)-n)]
            continue
        if final:
            for q in(vq,lq):
                for x in q:
                    if x.wr&(c.rd|c.crd|c.wr): raise Exception(f"unwaited: {x.text} -> {c.text}")
        if c.kind=="vm": vq.append(c)
        if c.kind=="ds": lq.append(c)
def emit(seg):
    out=[]
    for c in seg:
        if c.nop: out.append(f"s_nop {c.nop-1}")
        if c.kind=="wait":
            t=[]
            if c.vm is not None: t.append(f"vmcnt({c.vm})")
            if c.lg is not None: t.append(f"lgkmcnt({c.lg})")
            out.append("s_waitcnt "+" ".join(t) if t else "s_nop 0")
        else: out.append(c.text)
    return out
def cost(c):
    return {"mfma":8,"trans":8,"perm":8,"valu":4,"ds":4,"vm":8,"label":0}.get(c.kind,4)
def estimate(seg):
    t=0; g=None; prev=None
    for c in seg:
        if c.kind=="mfma":
            if g is not None: t+=max(16,g)
            g=8+4*c.nop
        else:
            x=cost(c)+4*c.nop
            if prev is not None and prev.kind=="mfma" and c.kind in("salu","wait") : x-=4
            if g is None: t+=x
            else: g+=x
        prev=c
    return t+(max(16,g) if g else 0)
```

```python
import sys, math, struct
from asmlib import *
OPT=dict(a.split("=") for a in sys.argv[2:])
opt=lambda k,d: type(d)(OPT.get(k,d))
STAMP=opt("stamp",0)
HB=159744; TOT=HB*512
O=lambda t,dt:96+32*t+4*dt
S=lambda n:80+8*(n%2)
P=lambda n:72+4*(n%2)
NM=lambda t:52+4*t
RAW=lambda i:32+4*(i%5)
Q=lambda t,j:16*t+4*j
K=lambda s,ab,j:80+32*(s%2)+16*ab+4*j
V=lambda s,dt:144+32*(s%2)+4*dt
L=lambda t:208+4*t
ONES=228
v4=lambda r:f"v[{r}:{r+3}]"; v2=lambda r:f"v[{r}:{r+1}]"
a4=lambda r:f"a[{r}:{r+3}]"; a2=lambda r:f"a[{r}:{r+1}]"
M32="v_mfma_f32_16x16x32_bf16"; M16="v_mfma_f32_16x16x16_bf16"
NTQ=opt("ntq",""); NTO=opt("nto",""); NTK=opt("ntk","")
f2u=lambda x:struct.unpack("I",struct.pack("f",x))[0]
class Gap:
    def __init__(s,m): s.m=m; s.sc=[]; s.vec=[]
    def used(s): return sum(cost(x) for x in s.vec)
def flat(gaps):
    out=[]
    for g in gaps:
        if g.m: out.append(g.m)
        out+=g.sc+g.vec
    return out
def qk(s,t,ab):
    n=5*s+t; d=v4(S(n)+4*ab)
    return [I(f"{M32} {d}, {a4(K(s,ab,j))}, {a4(Q(t,j))}, "+(d if j else ("0" if s==0 else v4(NM(t))))) for j in range(4)]
def pv(s,t):
    n=5*s+t
    if s==0: return [I(f"{M16} {v4(O(t,dt))}, {a2(V(s,dt))}, {v2(P(n))}, 0") for dt in range(8)]+[I(f"{M16} {a4(L(t))}, {a2(ONES)}, {v2(P(n))}, 0")]
    return [I(f"{M32} {v4(O(t,dt))}, {a4(V(s,dt))}, {v4(P(n))}, {v4(O(t,dt))}") for dt in range(8)]+[I(f"{M32} {a4(L(t))}, {a4(ONES)}, {v4(P(n))}, {a4(L(t))}")]
def cvts(n,ab): return [I(f"v_cvt_pk_bf16_f32 v{P(n)+2*ab+i}, v{S(n)+4*ab+2*i}, v{S(n)+4*ab+2*i+1}") for i in range(2)]
def kread(sg): return [I(f"ds_read_b128 {a4(K(sg,ab,j))}, v{4+j} offset:{8192*(sg%5)+4096*ab}") for ab in range(2 if sg%20 else 1) for j in range(4)]
def vread(sg): return [I(f"ds_read_b64_tr_b16 {a2(V(sg,dt)+2*ab)}, v{8+dt} offset:{8192*(sg%5)+4096*ab}") for dt in range(8) for ab in range(2 if sg%20 else 1)]
def qread(t): return [I(f"ds_read_b128 {a4(Q(t,j))}, v{23+j} offset:{4096*t}",tag=f"qr{t}") for j in range(4)]
def dma(sg):
    out=[]; sg%=20
    for ab in range(2 if sg else 1):
        o=8192*(sg%5)+4096*ab
        out.append((I(f"s_add_u32 m0, s21, {o}"),I(f"buffer_load_dwordx4 v16, s[8:11], s20 offen{NTK.replace('_',' ')} lds",tag=f"st{sg}"),None))
        inc=4096+(127*HB if (sg==19 and ab) else 0)
        out.append((I(f"s_add_u32 m0, s21, {40960+o}"),I(f"buffer_load_dwordx4 v17, s[12:15], s20 offen{NTK.replace('_',' ')} lds",tag=f"st{sg}"),I(f"s_add_u32 s20, s20, {inc}")))
    return out
def qload(i,r):
    pre=I(f"s_add_u32 s36, s{37 if i>=16 else 22}, {1024*i}")
    return pre,I(f"buffer_load_dwordx4 {v4(r)}, v{18+i%4}, s[4:7], s36 offen{NTQ.replace('_',' ')}",tag=f"q{i}")
def qscale(r):
    out=[]
    for h in(0,2):
        a,b=r+h,r+h+1
        out+=[f"v_lshlrev_b32 v28, 16, v{a}",f"v_and_b32 v29, s30, v{a}",f"v_lshlrev_b32 v30, 16, v{b}",f"v_and_b32 v31, s30, v{b}"]
        out+=[f"v_mul_f32 v{x}, s26, v{x}" for x in range(28,32)]
        out+=[f"v_cvt_pk_bf16_f32 v{a}, v28, v29",f"v_cvt_pk_bf16_f32 v{b}, v30, v31"]
    return [I(x) for x in out]
def qprep(i,r): return qscale(r)+[I(f"ds_write_b128 v22, {v4(r)} offset:{1024*i}")]
def rowmax(x,y):
    return [I(z) for z in(f"v_mov_b32 v{y}, v{x}",f"v_permlane16_swap_b32 v{x}, v{y}",f"v_max_f32 v{x}, v{x}, v{y}",f"v_mov_b32 v{y}, v{x}",f"v_permlane32_swap_b32 v{x}, v{y}",f"v_max_f32 v{x}, v{x}, v{y}")]
def chain(t):
    s=S(t)
    out=[I(f"v_max3_f32 v1, v{s}, v{s+1}, v{s+2}"),I(f"v_max_f32 v1, v1, v{s+3}")]+rowmax(1,2)
    out+=[I(f"v_sub_f32 v{NM(t)}, {'s25' if t==4 else 0}, v1")]
    out+=[I(f"v_add_f32 v{s+i}, v{s+i}, v{NM(t)}") for i in range(4)]
    for i in range(4):
        out.append(I(f"v_exp_f32 v{s+i}, v{s+i}"))
        if i: out.append(I(f"v_mov_b32 v{NM(t)+i}, v{NM(t)}"))
    return out+cvts(t,0)
def epi(t,soff=None):
    out=[I(f"v_accvgpr_read_b32 v3, a{L(t)}")]
    if soff is None: out+=[I(f"s_add_u32 s29, s{38 if t==4 else 23}, {4096*t}"),I("v_cmp_ngt_f32 vcc, s31, v3")]
    out+=[I("v_rcp_f32 v3, v3")]
    for u in range(4):
        x=O(t,2*u)
        out+=[I(f"v_mul_f32 v{x+i}, v3, v{x+i}") for i in range(8)]
        if u==0 and soff is None: out.append(I("s_or_b64 s[34:35], s[34:35], vcc"))
        out+=[I(f"v_cvt_pk_bf16_f32 v{x+i}, v{x+2*i}, v{x+2*i+1}") for i in range(4)]
        if u: out+=st
        st=[I(f"v_permlane16_swap_b32 v{x}, v{x+2}"),I(f"v_permlane16_swap_b32 v{x+1}, v{x+3}"),
            I(f"buffer_store_dwordx4 {v4(x)}, v27, s[16:19], {soff or 's29'} offen offset:{64*u}{NTO.replace('_',' ')}")]
    return out+st
def endit():
    return [I(x) for x in("s_cmp_lg_u64 s[34:35], 0","s_addc_u32 s28, s28, s28","s_mov_b64 s[34:35], 0",f"s_add_u32 s23, s23, {128*HB}","s_add_u32 s38, s23, s24")]
def merge(a,b):
    out=[];i=j=0
    while i<len(a) or j<len(b):
        if j>=len(b) or (i<len(a) and i*len(b)<=j*len(a)): out.append(a[i]);i+=1
        else: out.append(b[j]);j+=1
    return out
def spread(gaps,lst):
    tot=sum(cost(x) for x in lst)+sum(g.used() for g in gaps); acc=0; k=0
    for gi,g in enumerate(gaps):
        acc+=g.used()
        while k<len(lst) and (acc+cost(lst[k])/2<=tot*(gi+1)/len(gaps) or gi==len(gaps)-1):
            x=lst[k]; k+=1
            if x.kind in("salu","wait") and not g.sc and not g.vec: g.sc.append(x)
            else: g.vec.append(x); acc+=cost(x)
def stamp(k):
    return [I(f"s_memtime s[{60+2*k}:{61+2*k}]")] if STAMP else []
DG=opt("dg",1); QG=opt("qg",4)
def place_dma(G,d,gi):
    G[gi-1].sc.append(d[0]); G[gi].vec.append(d[1])
    if d[2]: G[gi+1].sc.append(d[2])
def reads_for(s):
    kr,vr=kread(s+1),vread(s+1)
    if s==19: return [kr,vr[:1]+qread(0),vr[1:3]+qread(1),vr[3:6]+qread(2),vr[6:]+qread(3)]
    return [kr[:5],kr[5:]+vr[:2],vr[2:7],vr[7:12],vr[12:]]
def barrier(G,s):
    G[-2].sc.append(W(vm=f"st{(s+2)%20}",lg="all")); G[-1].sc.append(I("s_barrier"))
def main_seg():
    out=[]; qq=[]
    for s in range(1,20):
        rd=reads_for(s); dm=dma(s+5)
        for t in range(5):
            n=5*s+t; ps,pt=divmod(n-1,5)
            G=[Gap(m) for m in qk(s,t,0)+qk(s,t,1)+pv(ps,pt)]
            if ps: G[0].vec+=cvts(n-1,1)
            for i in range(8): G[8+i].vec.append(I(f"v_exp_f32 v{S(n)+i}, v{S(n)+i}"))
            G[16].vec+=cvts(n,0)
            free=list(range(1,8))
            if t<len(dm): place_dma(G,dm[t],DG); free.remove(DG)
            if n%4==0 and n<=80:
                i=n//4-1; pre,ld=qload(i,RAW(i)); G[QG-1].sc.append(pre); G[QG].vec.append(ld); free.remove(QG)
                if i==19: G[8].sc.append(I(f"s_add_u32 s22, s22, {128*HB}")); G[9].sc.append(I("s_add_u32 s37, s22, s24"))
            if n>=19 and n%4==3 and n<99: G[12].sc.append(W(vm=f"q{(n-19)//4}"))
            if n>=20 and n%4==0: assert not qq; qq=qprep((n-20)//4,RAW((n-20)//4))
            r=list(rd[t]); k=len(qq) if n%4==3 else min(len(qq),max(0,2*len(free)-len(r)),opt("qmax",6))
            spread([G[i] for i in free],merge(r,qq[:k])); qq=qq[k:]
            if t==4: barrier(G,s)
            out+=flat(G)
    return out
def T_seg(mode):
    old=mode!="first"; new=mode!="last"; out=[]
    rd=reads_for(0); dm=dma(5)
    for t in range(5):
        A=[Gap(m) for m in qk(0,t,0)] if new else [Gap(None)]
        B=[Gap(m) for m in ((pv(19,4) if old else []) if t==0 else (pv(0,t-1) if new else []))] or [Gap(None) for _ in range(4)]
        if t==0 and old: A[0].vec+=cvts(99,1)
        e=epi(t) if old else []
        if t==4 and old: e+=endit()
        if new:
            r=list(rd[t])
            if t==0 and old: r=qread(4)+r
            if t<4: place_dma(A,dm[t],1)
            else:
                pre,ld=qload(0,RAW(0)); A[0].sc.append(pre); A[1].vec.append(ld)
            if t==3: B[-1].sc.append(W(lg="qr4"))
            h=len(e)*opt("eh",35)//100
            spread(A[2:]+B[:2],merge(r,e[:h])); spread(B[2:],merge(e[h:],chain(t)))
            if t==4: barrier(B,0)
        else: spread(B,e)
        out+=flat(A+B)
    return out
def txt(s): return [I(x.strip()) for x in s.strip().split("\n") if x.strip()]
def prologue():
    c=f2u(math.log2(math.e)/math.sqrt(128))
    o=txt(f"""s_cmp_ge_u32 s2, 256
    s_cbranch_scc1 END
    s_load_dwordx8 s[40:47], s[0:1], 0
    s_load_dwordx2 s[56:57], s[0:1], 32
    v_lshrrev_b32 v1, 6, v0
    v_and_b32 v0, 63, v0
    v_readfirstlane_b32 s48, v1
    v_lshrrev_b32 v1, 4, v0
    v_and_b32 v2, 15, v0
    s_and_b32 s49, s2, 7
    s_lshr_b32 s50, s2, 4
    s_lshl_b32 s50, s50, 3
    s_add_u32 s49, s49, s50
    s_mul_i32 s20, s49, {HB}
    s_bfe_u32 s50, s2, 0x10003
    s_lshl_b32 s50, s50, 2
    s_add_u32 s50, s50, s48
    s_mul_i32 s51, s50, 20480
    s_add_u32 s22, s20, s51
    s_mov_b32 s23, s22
    s_mov_b32 s39, s22
    s_mov_b32 s53, s20
    s_cmp_eq_u32 s50, 7
    s_cselect_b32 s24, 0x80000000, 0
    s_cselect_b32 s25, 0xf149f2ca, 0
    s_add_u32 s37, s22, s24
    s_add_u32 s38, s23, s24
    s_lshl_b32 s21, s48, 10
    s_lshl_b32 s51, s48, 2
    v_add_u32 v3, s51, v1
    v_xor_b32 v28, v2, v3
    v_lshlrev_b32 v28, 4, v28
    v_lshl_add_u32 v16, v3, 8, v28
    v_and_b32 v28, 7, v3
    v_lshlrev_b32 v28, 1, v28
    v_xor_b32 v28, v2, v28
    v_lshlrev_b32 v28, 4, v28
    v_lshl_add_u32 v17, v3, 8, v28
    v_xor_b32 v29, v2, v1
    v_lshlrev_b32 v29, 4, v29
    v_lshl_add_u32 v18, v1, 8, v29
    v_xor_b32 v19, 64, v18
    v_xor_b32 v20, 0x80, v18
    v_xor_b32 v21, 0xc0, v18
    s_waitcnt lgkmcnt(0)""")
    for i in range(4): o+=txt(f"s_mov_b32 s{4+4*i}, s{40+2*i}\ns_mov_b32 s{5+4*i}, s{41+2*i}\ns_mov_b32 s{6+4*i}, {TOT}\ns_mov_b32 s{7+4*i}, 0x20000")
    if STAMP: o+=stamp(0)+txt("s_memrealtime s[58:59]")
    def dm(sg): return [x for d in dma(sg) for x in d if x]
    o+=dm(0)
    for i in range(20): o+=list(qload(i,96+4*i))
    for sg in range(1,5): o+=dm(sg)
    o+=txt(f"""s_add_u32 s22, s22, {128*HB}
    s_add_u32 s37, s22, s24
    s_mov_b32 s26, {c}
    s_mov_b32 s30, 0xffff0000
    s_mov_b32 s31, {f2u(2.0**opt("thr",24))}
    s_mov_b32 s27, 0
    s_mov_b32 s28, 0
    s_mov_b64 s[34:35], 0
    s_mul_i32 s52, s48, 20480
    s_add_u32 s52, s52, 81920
    v_lshl_add_u32 v22, v0, 4, s52
    v_lshl_add_u32 v4, v2, 8, v29
    v_xor_b32 v5, 64, v4
    v_xor_b32 v6, 0x80, v4
    v_xor_b32 v7, 0xc0, v4
    v_lshrrev_b32 v3, 2, v0
    v_and_b32 v28, 7, v3
    v_lshlrev_b32 v28, 5, v28
    v_and_b32 v30, 3, v0
    v_cmp_eq_u32 vcc, 0, v30
    v_lshl_add_u32 v28, v30, 3, v28
    v_lshl_add_u32 v28, v3, 8, v28
    v_add_u32 v8, 40960, v28
    v_and_b32 v28, 1, v1
    v_lshlrev_b32 v28, 5, v28
    v_lshrrev_b32 v30, 1, v1
    v_lshl_add_u32 v28, v30, 4, v28
    v_lshl_add_u32 v27, v2, 8, v28
    v_mov_b32 v30, 0x3f803f80
    v_cndmask_b32 v30, 0, v30, vcc""")
    o+=[I(f"v_add_u32 v{23+j}, s52, v{4+j}") for j in range(4)]+[I(f"v_xor_b32 v{8+d}, {32*d}, v8") for d in range(1,8)]
    o+=[I(f"v_accvgpr_write_b32 a{ONES+i}, v30") for i in range(4)]
    for i in range(20):
        o+=[W(vm=f"q{i}")]+qprep(i,96+4*i)
        if i==0: o+=[I("s_barrier")]+kread(0)+vread(0)
        if i%4==3: o+=qread(i//4)
    o+=[W(vm="st1",lg="all"),I("s_barrier")]+stamp(1)
    return o
def fallback():
    WV=lambda:W(vm="all")
    kl=lambda:[I(f"buffer_load_dwordx4 {v4(160+4*j)}, v16, s[8:11], s29 offen offset:{64*j}") for j in range(4)]
    mm=lambda c:[I(f"{M32} v[80:83], {v4(160+4*j)}, {v4(32+4*j)}, "+("v[80:83]" if j else c)) for j in range(4)]+[I("s_nop 7")]
    nxt=lambda l:txt(f"s_add_u32 s29, s29, 4096\ns_sub_u32 s55, s55, 1\ns_cmp_lg_u32 s55, 0\ns_cbranch_scc1 {l}\ns_nop 7")
    o=[WV()]+txt("""s_cmp_eq_u32 s28, 0
    s_cbranch_scc1 END
    v_lshrrev_b32 v1, 4, v0
    v_and_b32 v2, 15, v0
    v_lshlrev_b32 v16, 4, v1
    v_lshl_add_u32 v16, v2, 8, v16
    v_lshlrev_b32 v17, 1, v2
    v_lshl_add_u32 v17, v1, 10, v17
    FB_ITEM:
    s_bitcmp1_b32 s28, 3
    s_cbranch_scc0 FB_NEXT
    s_mov_b32 s54, 0
    FB_TILE:
    s_lshl_b32 s36, s54, 12
    s_add_u32 s36, s36, s39
    s_cmp_eq_u32 s54, 4
    s_cselect_b32 s29, s24, 0
    s_add_u32 s36, s36, s29""")+[WV()]
    o+=[I(f"buffer_load_dwordx4 {v4(32+4*j)}, v16, s[4:7], s36 offen offset:{64*j}") for j in range(4)]+[WV()]
    for j in range(4): o+=qscale(32+4*j)
    o+=txt("v_mov_b32 v1, 0xff800000\ns_mov_b32 s29, s53\ns_mov_b32 s55, 39\nFB_P1:")+kl()+[WV()]+mm("0")
    o+=txt("v_max3_f32 v1, v1, v80, v81\nv_max3_f32 v1, v1, v82, v83")+nxt("FB_P1")+rowmax(1,2)
    o+=[I(f"v_sub_f32 v{52+i}, 0, v1") for i in range(4)]+[I(f"v_mov_b32 v{96+i}, 0") for i in range(32)]+[I(f"v_accvgpr_write_b32 a{L(0)+i}, 0") for i in range(4)]
    o+=txt("s_mov_b32 s29, s53\ns_mov_b32 s55, 39\nFB_P2:")+kl()
    for h in range(2): o+=[I(f"buffer_load_ushort v{176+16*h+2*dt+i}, v17, s[12:15], s29 offen offset:{256*(2*i+h)+32*dt}") for dt in range(8) for i in range(2)]
    o+=[WV()]+[I(f"v_lshl_or_b32 v{176+i}, v{192+i}, 16, v{176+i}") for i in range(16)]
    o+=mm("v[52:55]")+[I(f"v_exp_f32 v{80+i}, v{80+i}") for i in range(4)]+cvts(0,0)
    o+=[I(f"{M16} {v4(O(0,dt))}, {v2(176+2*dt)}, v[72:73], {v4(O(0,dt))}") for dt in range(8)]+[I(f"{M16} {a4(L(0))}, {a2(ONES)}, v[72:73], {a4(L(0))}")]
    o+=nxt("FB_P2")+epi(0,"s36")
    o+=txt(f"""s_add_u32 s54, s54, 1
    s_cmp_lt_u32 s54, 5
    s_cbranch_scc1 FB_TILE
    FB_NEXT:
    s_lshl_b32 s28, s28, 1
    s_add_u32 s39, s39, {128*HB}
    s_add_u32 s53, s53, {128*HB}
    s_and_b32 s28, s28, 15
    s_cbranch_scc1 FB_ITEM""")
    for x in o:
        if x.kind=="wait": x.vm=0
    return o
def dump():
    if not STAMP: return []
    o=[W(vm="all")]+stamp(9)+txt(f"""s_memrealtime s[80:81]
    s_waitcnt lgkmcnt(0)
    s_sub_u32 s60, s60, s80
    s_add_u32 s60, s60, s58
    s_cmp_eq_u32 s48, {opt("sw",0)}
    s_cbranch_scc0 NODUMP
    s_and_b32 s3, s2, 127
    s_cmp_eq_u32 s3, {opt("swg",0)}
    s_cbranch_scc0 NODUMP
    s_sub_u32 s80, s80, s58
    s_add_u32 s60, s60, s80
    s_mov_b32 s58, 256
    s_mov_b32 s59, 0x20000
    s_lshr_b32 s3, s2, 7
    s_lshl_b32 s3, s3, 6
    v_mov_b32 v2, 0
    v_mov_b32 v1, s80
    buffer_store_dword v1, v2, s[56:59], s3 offen""")
    for k in range(1,10): o+=txt(f"s_sub_u32 s80, s{60+2*k}, s60\nv_mov_b32 v1, s80\nbuffer_store_dword v1, v2, s[56:59], s3 offen offset:{4*k}")
    return o+txt("NODUMP:")
pro=prologue(); Tf=T_seg("first")+stamp(2)+txt("s_branch MAIN"); Tm=txt(".p2align 3\nTMID:")+T_seg("mid")+stamp(4)
Mn=txt("MAIN:")+main_seg()
Mn+=(txt("s_mov_b64 s[74:75], s[72:73]\ns_mov_b64 s[72:73], s[70:71]\ns_mov_b64 s[70:71], s[66:67]") if STAMP else [])+stamp(3)+txt("s_add_u32 s27, s27, 1\ns_cmp_lt_u32 s27, 4\ns_cbranch_scc1 TMID")
Tl=T_seg("last")+stamp(8)+dump(); fb=fallback()
path=pro+Tf+Mn+Tm+Mn+Tm+Mn+Tl+fb
fix_hazards(path); sim_waits(path,False); sim_waits(path,True)
print("est cycles: Tf",estimate(Tf),"main",estimate(Mn),"Tm",estimate(Tm),"Tl",estimate(Tl),"nops main",sum(x.nop for x in Mn),"Tm",sum(x.nop for x in Tm),file=sys.stderr)
ref=open("standalone__gqa_softmax__near_ridge.s.ref").read()
head=ref[:ref.index("    ; v1 = byte offset")].replace("grid=(159744,1,1) block=(256,1,1) lds=0","grid=(256,1,1) block=(256,1,1) lds=163840")
tail=ref[ref.index("s_endpgm"):].replace("next_free_vgpr 256","next_free_vgpr 512")
open(sys.argv[1],"w").write(head+"\n".join(emit(pro+Tf+Tm+Mn+Tl+fb))+"\nEND:\n"+tail)
```

```python
import sys, math, struct
from asmlib import *
OPT=dict(a.split("=") for a in sys.argv[2:])
opt=lambda k,d: type(d)(OPT.get(k,d))
STAMP=opt("stamp",0)
HB=159744; TOT=HB*512
O=lambda t,dt:96+32*t+4*dt
S=lambda n:80+8*(n%2)
P=lambda n:72+4*(n%2)
NM=lambda t:52+4*t
RAW=lambda i:32+4*(i%5)
Q=lambda t,j:16*t+4*j
K=lambda s,ab,j:80+32*(s%2)+16*ab+4*j
V=lambda s,dt:144+32*(s%2)+4*dt
L=lambda t:208+4*t
ONES=228
v4=lambda r:f"v[{r}:{r+3}]"; v2=lambda r:f"v[{r}:{r+1}]"
a4=lambda r:f"a[{r}:{r+3}]"; a2=lambda r:f"a[{r}:{r+1}]"
M32="v_mfma_f32_16x16x32_bf16"; M16="v_mfma_f32_16x16x16_bf16"
NTQ=opt("ntq",""); NTO=opt("nto",""); NTK=opt("ntk","")
f2u=lambda x:struct.unpack("I",struct.pack("f",x))[0]
class Gap:
    def __init__(s,m): s.m=m; s.sc=[]; s.vec=[]
    def used(s): return sum(cost(x) for x in s.vec)
def flat(gaps):
    out=[]
    for g in gaps:
        if g.m: out.append(g.m)
        out+=g.sc+g.vec
    return out
def qk(s,t,ab):
    n=5*s+t; d=v4(S(n)+4*ab)
    return [I(f"{M32} {d}, {a4(K(s,ab,j))}, {a4(Q(t,j))}, "+(d if j else ("0" if s==0 else v4(NM(t))))) for j in range(4)]
def pv(s,t):
    n=5*s+t
    if s==0: return [I(f"{M16} {v4(O(t,dt))}, {a2(V(s,dt))}, {v2(P(n))}, 0") for dt in range(8)]+[I(f"{M16} {a4(L(t))}, {a2(ONES)}, {v2(P(n))}, 0")]
    return [I(f"{M32} {v4(O(t,dt))}, {a4(V(s,dt))}, {v4(P(n))}, {v4(O(t,dt))}") for dt in range(8)]+[I(f"{M32} {a4(L(t))}, {a4(ONES)}, {v4(P(n))}, {a4(L(t))}")]
def cvts(n,ab): return [I(f"v_cvt_pk_bf16_f32 v{P(n)+2*ab+i}, v{S(n)+4*ab+2*i}, v{S(n)+4*ab+2*i+1}") for i in range(2)]
def kread(sg): return [I(f"ds_read_b128 {a4(K(sg,ab,j))}, v{4+j} offset:{8192*(sg%5)+4096*ab}") for ab in range(2 if sg%20 else 1) for j in range(4)]
def vread(sg): return [I(f"ds_read_b64_tr_b16 {a2(V(sg,dt)+2*ab)}, v{8+dt} offset:{8192*(sg%5)+4096*ab}") for dt in range(8) for ab in range(2 if sg%20 else 1)]
def qread(t): return [I(f"ds_read_b128 {a4(Q(t,j))}, v{23+j} offset:{4096*t}",tag=f"qr{t}") for j in range(4)]
def dma(sg):
    out=[]; sg%=20
    for ab in range(2 if sg else 1):
        o=8192*(sg%5)+4096*ab
        out.append((I(f"s_add_u32 m0, s21, {o}"),I(f"buffer_load_dwordx4 v16, s[8:11], s20 offen{NTK.replace('_',' ')} lds",tag=f"st{sg}"),None))
        inc=4096+(127*HB if (sg==19 and ab) else 0)
        out.append((I(f"s_add_u32 m0, s21, {40960+o}"),I(f"buffer_load_dwordx4 v17, s[12:15], s20 offen{NTK.replace('_',' ')} lds",tag=f"st{sg}"),I(f"s_add_u32 s20, s20, {inc}")))
    return out
def qload(i,r):
    pre=I(f"s_add_u32 s36, s{37 if i>=16 else 22}, {1024*i}")
    return pre,I(f"buffer_load_dwordx4 {v4(r)}, v{18+i%4}, s[4:7], s36 offen{NTQ.replace('_',' ')}",tag=f"q{i}")
def qscale(r):
    out=[]
    for h in(0,2):
        a,b=r+h,r+h+1
        out+=[f"v_lshlrev_b32 v28, 16, v{a}",f"v_and_b32 v29, s30, v{a}",f"v_lshlrev_b32 v30, 16, v{b}",f"v_and_b32 v31, s30, v{b}"]
        out+=[f"v_mul_f32 v{x}, s26, v{x}" for x in range(28,32)]
        out+=[f"v_cvt_pk_bf16_f32 v{a}, v28, v29",f"v_cvt_pk_bf16_f32 v{b}, v30, v31"]
    return [I(x) for x in out]
def qprep(i,r): return qscale(r)+[I(f"ds_write_b128 v22, {v4(r)} offset:{1024*i}")]
def rowmax(x,y):
    return [I(z) for z in(f"v_mov_b32 v{y}, v{x}",f"v_permlane16_swap_b32 v{x}, v{y}",f"v_max_f32 v{x}, v{x}, v{y}",f"v_mov_b32 v{y}, v{x}",f"v_permlane32_swap_b32 v{x}, v{y}",f"v_max_f32 v{x}, v{x}, v{y}")]
def chain(t):
    s=S(t)
    out=[I(f"v_max3_f32 v1, v{s}, v{s+1}, v{s+2}"),I(f"v_max_f32 v1, v1, v{s+3}")]+rowmax(1,2)
    out+=[I(f"v_sub_f32 v{NM(t)}, {'s25' if t==4 else 0}, v1")]
    out+=[I(f"v_add_f32 v{s+i}, v{s+i}, v{NM(t)}") for i in range(4)]
    for i in range(4):
        out.append(I(f"v_exp_f32 v{s+i}, v{s+i}"))
        if i: out.append(I(f"v_mov_b32 v{NM(t)+i}, v{NM(t)}"))
    return out+cvts(t,0)
def epi(t,soff=None):
    out=[I(f"v_accvgpr_read_b32 v3, a{L(t)}")]
    if soff is None: out+=[I(f"s_add_u32 s29, s{38 if t==4 else 23}, {4096*t}"),I("v_cmp_ngt_f32 vcc, s31, v3")]
    out+=[I("v_rcp_f32 v3, v3")]
    for u in range(4):
        x=O(t,2*u)
        out+=[I(f"v_mul_f32 v{x+i}, v3, v{x+i}") for i in range(8)]
        if u==0 and soff is None: out.append(I("s_or_b64 s[34:35], s[34:35], vcc"))
        out+=[I(f"v_cvt_pk_bf16_f32 v{x+i}, v{x+2*i}, v{x+2*i+1}") for i in range(4)]
        if u: out+=st
        st=[I(f"v_permlane16_swap_b32 v{x}, v{x+2}"),I(f"v_permlane16_swap_b32 v{x+1}, v{x+3}"),
            I(f"buffer_store_dwordx4 {v4(x)}, v27, s[16:19], {soff or 's29'} offen offset:{64*u}{NTO.replace('_',' ')}")]
    return out+st
def endit():
    return [I(x) for x in("s_cmp_lg_u64 s[34:35], 0","s_addc_u32 s28, s28, s28","s_mov_b64 s[34:35], 0",f"s_add_u32 s23, s23, {128*HB}","s_add_u32 s38, s23, s24")]
def merge(a,b):
    out=[];i=j=0
    while i<len(a) or j<len(b):
        if j>=len(b) or (i<len(a) and i*len(b)<=j*len(a)): out.append(a[i]);i+=1
        else: out.append(b[j]);j+=1
    return out
def spread(gaps,lst):
    tot=sum(cost(x) for x in lst)+sum(g.used() for g in gaps); acc=0; k=0
    for gi,g in enumerate(gaps):
        acc+=g.used()
        while k<len(lst) and (acc+cost(lst[k])/2<=tot*(gi+1)/len(gaps) or gi==len(gaps)-1):
            x=lst[k]; k+=1
            if x.kind in("salu","wait") and not g.sc and not g.vec: g.sc.append(x)
            else: g.vec.append(x); acc+=cost(x)
def stamp(k):
    return [I(f"s_memtime s[{60+2*k}:{61+2*k}]")] if STAMP else []
DG=opt("dg",1); QG=opt("qg",4)
def place_dma(G,d,gi):
    G[gi-1].sc.append(d[0]); G[gi].vec.append(d[1])
    if d[2]: G[gi+1].sc.append(d[2])
def reads_for(s):
    kr,vr=kread(s+1),vread(s+1)
    if s==19: return [kr,vr[:1]+qread(0),vr[1:3]+qread(1),vr[3:6]+qread(2),vr[6:]+qread(3)]
    return [kr[:5],kr[5:]+vr[:2],vr[2:7],vr[7:12],vr[12:]]
def barrier(G,s):
    G[-2].sc.append(W(vm=f"st{(s+2)%20}",lg="all")); G[-1].sc.append(I("s_barrier"))
def main_seg():
    out=[]; qq=[]
    for s in range(1,20):
        rd=reads_for(s); dm=dma(s+5)
        for t in range(5):
            n=5*s+t; ps,pt=divmod(n-1,5)
            G=[Gap(m) for m in qk(s,t,0)+qk(s,t,1)+pv(ps,pt)]
            if ps: G[0].vec+=cvts(n-1,1)
            for i in range(8): G[8+i].vec.append(I(f"v_exp_f32 v{S(n)+i}, v{S(n)+i}"))
            G[16].vec+=cvts(n,0)
            free=list(range(1,8))
            if t<len(dm): place_dma(G,dm[t],DG); free.remove(DG)
            if n%4==0 and n<=80:
                i=n//4-1; pre,ld=qload(i,RAW(i)); G[QG-1].sc.append(pre); G[QG].vec.append(ld); free.remove(QG)
                if i==19: G[8].sc.append(I(f"s_add_u32 s22, s22, {128*HB}")); G[9].sc.append(I("s_add_u32 s37, s22, s24"))
            if n>=19 and n%4==3 and n<99: G[12].sc.append(W(vm=f"q{(n-19)//4}"))
            if n>=20 and n%4==0: assert not qq; qq=qprep((n-20)//4,RAW((n-20)//4))
            r=list(rd[t]); k=len(qq) if n%4==3 else min(len(qq),max(0,2*len(free)-len(r)),opt("qmax",6))
            spread([G[i] for i in free],merge(r,qq[:k])); qq=qq[k:]
            if t==4: barrier(G,s)
            out+=flat(G)
    return out
def T_seg(mode):
    old=mode!="first"; new=mode!="last"; out=[]
    rd=reads_for(0); dm=dma(5)
    for t in range(5):
        A=[Gap(m) for m in qk(0,t,0)] if new else [Gap(None)]
        B=[Gap(m) for m in ((pv(19,4) if old else []) if t==0 else (pv(0,t-1) if new else []))] or [Gap(None) for _ in range(4)]
        if t==0 and old: A[0].vec+=cvts(99,1)
        e=epi(t) if old else []
        if t==4 and old: e+=endit()
        if new:
            r=list(rd[t])
            if t==0 and old: r=qread(4)+r
            if t<4: place_dma(A,dm[t],1)
            else:
                pre,ld=qload(0,RAW(0)); A[0].sc.append(pre); A[1].vec.append(ld)
            if t==3: B[-1].sc.append(W(lg="qr4"))
            h=len(e)*opt("eh",35)//100
            spread(A[2:]+B[:2],merge(r,e[:h])); spread(B[2:],merge(e[h:],chain(t)))
            if t==4: barrier(B,0)
        else: spread(B,e)
        out+=flat(A+B)
    return out
def txt(s): return [I(x.strip()) for x in s.strip().split("\n") if x.strip()]
def prologue():
    c=f2u(math.log2(math.e)/math.sqrt(128))
    o=txt(f"""s_cmp_ge_u32 s2, 256
    s_cbranch_scc1 END
    s_load_dwordx8 s[40:47], s[0:1], 0
    s_load_dwordx2 s[56:57], s[0:1], 32
    v_lshrrev_b32 v1, 6, v0
    v_and_b32 v0, 63, v0
    v_readfirstlane_b32 s48, v1
    v_lshrrev_b32 v1, 4, v0
    v_and_b32 v2, 15, v0
    s_and_b32 s49, s2, 7
    s_lshr_b32 s50, s2, 4
    s_lshl_b32 s50, s50, 3
    s_add_u32 s49, s49, s50
    s_mul_i32 s20, s49, {HB}
    s_bfe_u32 s50, s2, 0x10003
    s_lshl_b32 s50, s50, 2
    s_add_u32 s50, s50, s48
    s_mul_i32 s51, s50, 20480
    s_add_u32 s22, s20, s51
    s_mov_b32 s23, s22
    s_mov_b32 s39, s22
    s_mov_b32 s53, s20
    s_cmp_eq_u32 s50, 7
    s_cselect_b32 s24, 0x80000000, 0
    s_cselect_b32 s25, 0xf149f2ca, 0
    s_add_u32 s37, s22, s24
    s_add_u32 s38, s23, s24
    s_lshl_b32 s21, s48, 10
    s_lshl_b32 s51, s48, 2
    v_add_u32 v3, s51, v1
    v_xor_b32 v28, v2, v3
    v_lshlrev_b32 v28, 4, v28
    v_lshl_add_u32 v16, v3, 8, v28
    v_and_b32 v28, 7, v3
    v_lshlrev_b32 v28, 1, v28
    v_xor_b32 v28, v2, v28
    v_lshlrev_b32 v28, 4, v28
    v_lshl_add_u32 v17, v3, 8, v28
    v_xor_b32 v29, v2, v1
    v_lshlrev_b32 v29, 4, v29
    v_lshl_add_u32 v18, v1, 8, v29
    v_xor_b32 v19, 64, v18
    v_xor_b32 v20, 0x80, v18
    v_xor_b32 v21, 0xc0, v18
    s_waitcnt lgkmcnt(0)""")
    for i in range(4): o+=txt(f"s_mov_b32 s{4+4*i}, s{40+2*i}\ns_mov_b32 s{5+4*i}, s{41+2*i}\ns_mov_b32 s{6+4*i}, {TOT}\ns_mov_b32 s{7+4*i}, 0x20000")
    if STAMP: o+=stamp(0)+txt("s_memrealtime s[58:59]")
    def dm(sg): return [x for d in dma(sg) for x in d if x]
    o+=dm(0)
    for i in range(20): o+=list(qload(i,96+4*i))
    LATE=opt("late",0)
    for sg in range(1,2 if LATE else 5): o+=dm(sg)
    o+=txt(f"""s_add_u32 s22, s22, {128*HB}
    s_add_u32 s37, s22, s24
    s_mov_b32 s26, {c}
    s_mov_b32 s30, 0xffff0000
    s_mov_b32 s31, {f2u(2.0**opt("thr",24))}
    s_mov_b32 s27, 0
    s_mov_b32 s28, 0
    s_mov_b64 s[34:35], 0
    s_mul_i32 s52, s48, 20480
    s_add_u32 s52, s52, 81920
    v_lshl_add_u32 v22, v0, 4, s52
    v_lshl_add_u32 v4, v2, 8, v29
    v_xor_b32 v5, 64, v4
    v_xor_b32 v6, 0x80, v4
    v_xor_b32 v7, 0xc0, v4
    v_lshrrev_b32 v3, 2, v0
    v_and_b32 v28, 7, v3
    v_lshlrev_b32 v28, 5, v28
    v_and_b32 v30, 3, v0
    v_cmp_eq_u32 vcc, 0, v30
    v_lshl_add_u32 v28, v30, 3, v28
    v_lshl_add_u32 v28, v3, 8, v28
    v_add_u32 v8, 40960, v28
    v_and_b32 v28, 1, v1
    v_lshlrev_b32 v28, 5, v28
    v_lshrrev_b32 v30, 1, v1
    v_lshl_add_u32 v28, v30, 4, v28
    v_lshl_add_u32 v27, v2, 8, v28
    v_mov_b32 v30, 0x3f803f80
    v_cndmask_b32 v30, 0, v30, vcc""")
    o+=[I(f"v_add_u32 v{23+j}, s52, v{4+j}") for j in range(4)]+[I(f"v_xor_b32 v{8+d}, {32*d}, v8") for d in range(1,8)]
    o+=[I(f"v_accvgpr_write_b32 a{ONES+i}, v30") for i in range(4)]
    for i in range(20):
        o+=[W(vm=f"q{i}")]+qprep(i,96+4*i)
        if i==0: o+=[I("s_barrier")]+kread(0)+vread(0)
        if i%4==3: o+=qread(i//4)
        if LATE and i>=LATE and i<LATE+3: o+=dm(i-LATE+2)
    o+=[W(vm="st1",lg="all"),I("s_barrier")]+stamp(1)
    return o
def fallback():
    WV=lambda:W(vm="all")
    kl=lambda:[I(f"buffer_load_dwordx4 {v4(160+4*j)}, v16, s[8:11], s29 offen offset:{64*j}") for j in range(4)]
    mm=lambda c:[I(f"{M32} v[80:83], {v4(160+4*j)}, {v4(32+4*j)}, "+("v[80:83]" if j else c)) for j in range(4)]+[I("s_nop 7")]
    nxt=lambda l:txt(f"s_add_u32 s29, s29, 4096\ns_sub_u32 s55, s55, 1\ns_cmp_lg_u32 s55, 0\ns_cbranch_scc1 {l}\ns_nop 7")
    o=[WV()]+txt("""s_cmp_eq_u32 s28, 0
    s_cbranch_scc1 END
    v_lshrrev_b32 v1, 4, v0
    v_and_b32 v2, 15, v0
    v_lshlrev_b32 v16, 4, v1
    v_lshl_add_u32 v16, v2, 8, v16
    v_lshlrev_b32 v17, 1, v2
    v_lshl_add_u32 v17, v1, 10, v17
    FB_ITEM:
    s_bitcmp1_b32 s28, 3
    s_cbranch_scc0 FB_NEXT
    s_mov_b32 s54, 0
    FB_TILE:
    s_lshl_b32 s36, s54, 12
    s_add_u32 s36, s36, s39
    s_cmp_eq_u32 s54, 4
    s_cselect_b32 s29, s24, 0
    s_add_u32 s36, s36, s29""")+[WV()]
    o+=[I(f"buffer_load_dwordx4 {v4(32+4*j)}, v16, s[4:7], s36 offen offset:{64*j}") for j in range(4)]+[WV()]
    for j in range(4): o+=qscale(32+4*j)
    o+=txt("v_mov_b32 v1, 0xff800000\ns_mov_b32 s29, s53\ns_mov_b32 s55, 39\nFB_P1:")+kl()+[WV()]+mm("0")
    o+=txt("v_max3_f32 v1, v1, v80, v81\nv_max3_f32 v1, v1, v82, v83")+nxt("FB_P1")+rowmax(1,2)
    o+=[I(f"v_sub_f32 v{52+i}, 0, v1") for i in range(4)]+[I(f"v_mov_b32 v{96+i}, 0") for i in range(32)]+[I(f"v_accvgpr_write_b32 a{L(0)+i}, 0") for i in range(4)]
    o+=txt("s_mov_b32 s29, s53\ns_mov_b32 s55, 39\nFB_P2:")+kl()
    for h in range(2): o+=[I(f"buffer_load_ushort v{176+16*h+2*dt+i}, v17, s[12:15], s29 offen offset:{256*(2*i+h)+32*dt}") for dt in range(8) for i in range(2)]
    o+=[WV()]+[I(f"v_lshl_or_b32 v{176+i}, v{192+i}, 16, v{176+i}") for i in range(16)]
    o+=mm("v[52:55]")+[I(f"v_exp_f32 v{80+i}, v{80+i}") for i in range(4)]+cvts(0,0)
    o+=[I(f"{M16} {v4(O(0,dt))}, {v2(176+2*dt)}, v[72:73], {v4(O(0,dt))}") for dt in range(8)]+[I(f"{M16} {a4(L(0))}, {a2(ONES)}, v[72:73], {a4(L(0))}")]
    o+=nxt("FB_P2")+epi(0,"s36")
    o+=txt(f"""s_add_u32 s54, s54, 1
    s_cmp_lt_u32 s54, 5
    s_cbranch_scc1 FB_TILE
    FB_NEXT:
    s_lshl_b32 s28, s28, 1
    s_add_u32 s39, s39, {128*HB}
    s_add_u32 s53, s53, {128*HB}
    s_and_b32 s28, s28, 15
    s_cbranch_scc1 FB_ITEM""")
    for x in o:
        if x.kind=="wait": x.vm=0
    return o
def dump():
    if not STAMP: return []
    o=[W(vm="all")]+stamp(9)+txt(f"""s_memrealtime s[80:81]
    s_waitcnt lgkmcnt(0)
    s_sub_u32 s60, s60, s80
    s_add_u32 s60, s60, s58
    s_cmp_eq_u32 s48, {opt("sw",0)}
    s_cbranch_scc0 NODUMP
    s_and_b32 s3, s2, 127
    s_cmp_eq_u32 s3, {opt("swg",0)}
    s_cbranch_scc0 NODUMP
    s_sub_u32 s80, s80, s58
    s_add_u32 s60, s60, s80
    s_mov_b32 s58, 256
    s_mov_b32 s59, 0x20000
    s_lshr_b32 s3, s2, 7
    s_lshl_b32 s3, s3, 6
    v_mov_b32 v2, 0
    v_mov_b32 v1, s80
    buffer_store_dword v1, v2, s[56:59], s3 offen""")
    for k in range(1,10): o+=txt(f"s_sub_u32 s80, s{60+2*k}, s60\nv_mov_b32 v1, s80\nbuffer_store_dword v1, v2, s[56:59], s3 offen offset:{4*k}")
    return o+txt("NODUMP:")
pro=prologue(); Tf=T_seg("first")+stamp(2)+txt("s_branch MAIN"); Tm=txt(".p2align 3\nTMID:")+T_seg("mid")+stamp(4)
Mn=txt("MAIN:")+main_seg()
Mn+=(txt("s_mov_b64 s[74:75], s[72:73]\ns_mov_b64 s[72:73], s[70:71]\ns_mov_b64 s[70:71], s[66:67]") if STAMP else [])+stamp(3)+txt("s_add_u32 s27, s27, 1\ns_cmp_lt_u32 s27, 4\ns_cbranch_scc1 TMID")
Tl=T_seg("last")+stamp(8)+dump(); fb=fallback()
if opt("nomfma",0):
    flt=lambda g:[x for x in g if not(x.kind in("mfma","trans","perm") or x.op.startswith(("v_cvt","v_mul","v_cmp","s_or_b64","ds_read")))]
    Tf,Tm,Mn,Tl=flt(Tf),flt(Tm),flt(Mn),flt(Tl)
if opt("nost",0): Tm=[x for x in Tm if not x.op.startswith("buffer_store")]
path=pro+Tf+Mn+Tm+Mn+Tm+Mn+Tl+fb
fix_hazards(path); sim_waits(path,False); sim_waits(path,True)
print("est cycles: Tf",estimate(Tf),"main",estimate(Mn),"Tm",estimate(Tm),"Tl",estimate(Tl),"nops main",sum(x.nop for x in Mn),"Tm",sum(x.nop for x in Tm),file=sys.stderr)
ref=open("standalone__gqa_softmax__near_ridge.s.ref").read()
head=ref[:ref.index("    ; v1 = byte offset")].replace("grid=(159744,1,1) block=(256,1,1) lds=0","grid=(256,1,1) block=(256,1,1) lds=163840")
tail=ref[ref.index("s_endpgm"):].replace("next_free_vgpr 256","next_free_vgpr 512")
open(sys.argv[1],"w").write(head+"\n".join(emit(pro+Tf+Tm+Mn+Tl+fb))+"\nEND:\n"+tail)
```
